```python
import torch

def _softmax(x, axis=-1):
    return torch.softmax(x, dim=axis)
def _gelu(x):
    return torch.nn.functional.gelu(x, approximate="tanh")
def _silu(x):
    return torch.nn.functional.silu(x)
def _sigmoid(x):
    return torch.sigmoid(x)
def _layernorm(x, axis=-1, eps=1e-5):
    m = x.mean(dim=axis, keepdim=True)
    v = x.var(dim=axis, keepdim=True, unbiased=False)
    return (x - m) / torch.sqrt(v + eps)
def _scatter_add(tgt, idx, src, axis=0):
    return tgt.clone().index_add_(axis, idx, src)
def _segment_sum(src, seg, n):
    out = torch.zeros((n,) + src.shape[1:], dtype=src.dtype)
    return out.index_add_(0, seg, src)
def _pad(x, pw):
    flat = tuple(v for pair in reversed(pw) for v in pair)
    return torch.nn.functional.pad(x, flat)

kernel_name = 'sequential_preLN__grouped_kv_mqa__dense_activation_relu__prompt'

def setup_inputs():

    _w = (lambda a: (lambda t: t.to(torch.bfloat16) if t.is_floating_point() else t)(torch.as_tensor(a)))
    def _A_setup():
        B, S, D, H = 1, 2048, 512, 32
        Dh = D // H
        return {
            "x": _w((lambda *s: torch.randn(*s, dtype=torch.bfloat16) * 0.05)(B, S, D)),
            "wq": _w((lambda *s: torch.randn(*s, dtype=torch.bfloat16) * 0.05)(D, H * Dh)),
            "wk": _w((lambda *s: torch.randn(*s, dtype=torch.bfloat16) * 0.05)(D, Dh)),
            "wv": _w((lambda *s: torch.randn(*s, dtype=torch.bfloat16) * 0.05)(D, Dh)),
            "wo": _w((lambda *s: torch.randn(*s, dtype=torch.bfloat16) * 0.05)(H * Dh, D)),
        }
    _A_in = _A_setup()

    def _B_setup():
        B, S, D, Dff = 1, 2048, 512, 1792
        return {
            "x": _w((lambda *s: torch.randn(*s, dtype=torch.bfloat16) * 0.05)(B, S, D)),
            "w1": _w((lambda *s: torch.randn(*s, dtype=torch.bfloat16) * 0.05)(D, Dff)),
            "w2": _w((lambda *s: torch.randn(*s, dtype=torch.bfloat16) * 0.05)(Dff, D)),
        }
    _B_in = _B_setup()

    return {
        "A_x": _A_in["x"],
        "A_wq": _A_in["wq"],
        "A_wk": _A_in["wk"],
        "A_wv": _A_in["wv"],
        "A_wo": _A_in["wo"],
        "B_x": _B_in["x"],
        "B_w1": _B_in["w1"],
        "B_w2": _B_in["w2"],
    }

def reference(A_x, A_wq, A_wk, A_wv, A_wo, B_x, B_w1, B_w2):
    def _A_ref(x, wq, wk, wv, wo):
        B, S, D = x.shape
        H = 32
        Dh = D // H
        q = (lambda x, *d: x.permute(*d))((x @ wq).reshape(B, S, H, Dh), 0, 2, 1, 3)
        k = x @ wk
        v = x @ wv
        scores = torch.einsum("bhqd,bkd->bhqk", q, k) * (Dh ** -0.5)
        p = _softmax(scores, axis=-1)
        o = torch.einsum("bhqk,bkd->bhqd", p, v)
        return (lambda x, *d: x.permute(*d))(o, 0, 2, 1, 3).reshape(B, S, H * Dh) @ wo

    def _B_ref(x, w1, w2):
        h = torch.einsum("bsd,df->bsf", x, w1)
        zero = torch.zeros_like(h)
        h = torch.maximum(h, zero)
        return torch.einsum("bsf,fd->bsd", h, w2)

    x = A_x
    h = x + _A_ref(_layernorm(x, axis=-1), A_wq, A_wk, A_wv, A_wo)
    h2 = h + _B_ref(_layernorm(h, axis=-1), B_w1, B_w2)
    return h2
```

```python
import re

REG_RE = re.compile(r'\b([vs])\[(\d+):(\d+)\]|\b([vs])(\d+)\b|\b(vcc|exec|m0|scc)\b')
TRANS = ("v_exp_", "v_log_", "v_rcp_", "v_rsq_", "v_sqrt_", "v_sin_", "v_cos_")

def regs_of(tok):
    out = []
    for m in REG_RE.finditer(tok):
        if m.group(1):
            out += [f"{m.group(1)}{i}" for i in range(int(m.group(2)), int(m.group(3)) + 1)]
        elif m.group(4):
            out.append(f"{m.group(4)}{m.group(5)}")
        else:
            out.append(m.group(6))
    return out

def split_ops(rest):
    ops, cur, depth = [], "", 0
    for ch in rest:
        if ch == "[": depth += 1
        if ch == "]": depth -= 1
        if ch == "," and depth == 0:
            ops.append(cur.strip()); cur = ""
        else:
            cur += ch
    if cur.strip(): ops.append(cur.strip())
    return ops

class Ins:
    __slots__ = ("text", "op", "cls", "wr", "rd", "a", "b", "c", "passes", "states", "wide_store", "lds_dma")
    def __init__(self, text):
        self.text = text
        t = text.split(";")[0].strip()
        parts = t.split(None, 1)
        op = self.op = parts[0]
        ops = split_ops(parts[1]) if len(parts) > 1 else []
        self.wr, self.rd = [], []
        self.a = self.b = self.c = ()
        self.passes = 0; self.states = 1; self.wide_store = (); self.lds_dma = False
        R = [regs_of(o) for o in ops]
        flat = lambda xs: [r for x in xs for r in x]
        if op.startswith("v_mfma") or op.startswith("v_smfmac"):
            self.cls = "mfma"
            self.passes = 8 if "32x32" in op else 4
            self.wr = R[0]; self.a = R[1]; self.b = R[2]
            if op.startswith("v_smfmac"):
                self.c = R[0]; self.a = R[1] + R[3]
            else:
                self.c = R[3]
            self.rd = list(self.a) + list(self.b) + list(self.c)
        elif op.startswith("v_"):
            self.cls = "trans" if op.startswith(TRANS) else "valu"
            if op.startswith("v_cmp"):
                self.wr = R[0]; self.rd = flat(R[1:])
                if op.startswith("v_cmpx"): self.wr = self.wr + ["exec"]
            elif op.startswith("v_permlane") and "swap" in op:
                self.wr = R[0] + R[1]; self.rd = R[0] + R[1]
            elif op.startswith(("v_add_co", "v_sub_co", "v_addc_co", "v_subb_co")):
                self.wr = R[0] + R[1]; self.rd = flat(R[2:])
            elif op == "v_nop":
                pass
            else:
                self.wr = R[0]; self.rd = flat(R[1:])
                if op.startswith(("v_fmac", "v_dot2c", "v_pk_fmac", "v_writelane")) or "_dpp" in op or "row_" in t or "quad_perm" in t:
                    self.rd = self.rd + R[0]
        elif op.startswith("ds_"):
            self.cls = "ds"
            if op.startswith(("ds_read", "ds_bpermute", "ds_permute", "ds_swizzle")):
                self.wr = R[0]; self.rd = flat(R[1:])
            else:
                self.rd = flat(R)
        elif op.startswith(("buffer_", "global_")):
            self.cls = "vmem"
            if " lds" in t and "load" in op:
                self.rd = flat(R) + ["m0"]; self.lds_dma = True
            elif "load" in op:
                self.wr = R[0]; self.rd = flat(R[1:])
            elif op.startswith("buffer_store"):
                self.rd = flat(R)
                if "x3" in op or "x4" in op: self.wide_store = tuple(R[0])
            elif op.startswith("global_store"):
                self.rd = flat(R)
                if "x3" in op or "x4" in op: self.wide_store = tuple(R[1])
            else:
                self.rd = flat(R)
        elif op.startswith(("s_load", "s_memtime", "s_memrealtime", "s_buffer_load")):
            self.cls = "smem"; self.wr = R[0]; self.rd = flat(R[1:])
        elif op.startswith("s_"):
            self.cls = "salu"
            if op == "s_nop":
                self.states = int(ops[0]) + 1
            elif op.startswith(("s_cmp", "s_bitcmp")):
                self.rd = flat(R)
            elif op.startswith(("s_waitcnt", "s_barrier", "s_branch", "s_cbranch", "s_setprio", "s_sleep", "s_endpgm")):
                self.rd = flat(R)
            elif "saveexec" in op:
                self.wr = R[0] + ["exec"]; self.rd = flat(R[1:]) + ["exec"]
            else:
                self.wr = R[0]; self.rd = flat(R[1:])
        else:
            raise ValueError("unknown op " + text)

def need_states(p, c):
    n = 0
    pw = set(p.wr)
    valu_p = p.cls in ("valu", "trans")
    if valu_p:
        vw = {r for r in pw if r[0] == "v" and r != "vcc"}
        sw = pw - vw
        if c.cls == "mfma" and vw & set(c.rd): n = max(n, 2)
        if c.cls == "mfma" and "exec" in pw: n = max(n, 4)
        if c.op.startswith("v_permlane") and vw & set(c.rd): n = max(n, 2)
        if c.op.startswith(("v_readlane", "v_readfirstlane")) and vw & set(c.rd): n = max(n, 1)
        if ("_dpp" in c.op or "row_" in c.text or "quad_perm" in c.text) and vw & set(c.rd): n = max(n, 2)
        if "exec" in pw and ("_dpp" in c.op or "row_" in c.text): n = max(n, 5)
        if "exec" in pw and c.op.startswith(("v_readlane", "v_readfirstlane", "v_writelane", "v_permlane")): n = max(n, 4)
        if p.cls == "trans" and c.cls in ("valu", "mfma") and vw & set(c.rd): n = max(n, 1)
        if sw & set(c.rd):
            if c.cls == "vmem": n = max(n, 5)
            elif c.cls in ("valu", "trans"): n = max(n, 4 if c.op.startswith(("v_readlane", "v_writelane")) else 2)
            elif c.cls == "salu": n = max(n, 1)
        if "vcc" in pw and c.op.startswith("s_cbranch_vcc"): n = max(n, 1)
        if p.op.startswith("v_dot") and vw & (set(c.rd) | set(c.wr)):
            same_chain = c.op == p.op and not (vw & set(regs_ab_of_dot(c)))
            if not same_chain: n = max(n, 3)
        if "op_sel" in p.text and c.cls in ("valu", "trans") and vw & (set(c.rd) | set(c.wr)): n = max(n, 1)
    if p.cls == "mfma":
        big = {4: 8, 8: 12}[p.passes]; mid = {4: 6, 8: 10}[p.passes]; war = {4: 3, 8: 7}[p.passes]
        if c.cls == "mfma":
            if pw & (set(c.a) | set(c.b)): n = max(n, big)
            if pw & set(c.c):
                if not (list(c.c) == list(p.wr) and c.passes == p.passes): n = max(n, mid)
            elif pw & set(c.wr):
                if not (list(c.wr) == list(p.wr) and c.passes == p.passes): n = max(n, mid)
        elif c.cls in ("valu", "trans", "ds", "vmem"):
            if pw & (set(c.rd) | set(c.wr)): n = max(n, big)
            if c.cls in ("valu", "trans") and set(p.c) & set(c.wr): n = max(n, war)
    if p.cls == "salu" and "m0" in pw and c.lds_dma: n = max(n, 1)
    if p.wide_store and set(p.wide_store) & set(c.wr): n = max(n, 2)
    return n

def regs_ab_of_dot(c):
    ops = split_ops(c.text.split(";")[0].strip().split(None, 1)[1])
    return regs_of(ops[1]) + regs_of(ops[2])

class Asm:
    def __init__(self):
        self.lines = []
        self.hist = []
        self.vm = []
        self.lg = []
        self.smem = False
        self.smem_regs = set()
        self.nops = 0
        self.ninstr = 0
    def raw(self, s): self.lines.append(s)
    def comment(self, s): self.lines.append("; " + s)
    def label(self, name):
        self.lines.append(name + ":")
    def fence(self, n=12):
        self.hist = []
    def __call__(self, text, tag=None):
        for t in text.split("\n"):
            t = t.strip()
            if t: self._emit(t, tag)
    def _emit(self, text, tag):
        ins = Ins(text)
        touched = set(ins.rd) | set(ins.wr)
        for q, nm in ((self.vm, "vmcnt"), (self.lg, "lgkmcnt")):
            for e in q:
                if e["regs"] & touched:
                    same_queue_waw = (e["regs"] & set(ins.rd)) == set() and False
                    raise RuntimeError(f"missing {nm} wait before: {text} (pending {e['text']})")
        if self.smem_regs & touched:
            raise RuntimeError(f"missing smem wait before: {text}")
        need = 0; dist = 0
        for p in reversed(self.hist):
            k = need_states(p, ins)
            if k - dist > need: need = k - dist
            dist += p.states
            if dist >= 20: break
        while need > 0:
            k = min(need, 16)
            nop = Ins(f"s_nop {k-1}")
            self.lines.append("    " + nop.text); self.hist.append(nop); self.nops += k
            need -= k
        self.lines.append("    " + text)
        self.ninstr += 1
        self.hist.append(ins); self.hist = self.hist[-40:]
        if ins.cls == "vmem":
            self.vm.append(dict(tag=tag, regs=set(ins.wr), text=text))
        elif ins.cls == "ds":
            self.lg.append(dict(tag=tag, regs=set(ins.wr), text=text))
        elif ins.cls == "smem":
            self.smem = True; self.smem_regs |= set(ins.wr)
        elif ins.op == "s_waitcnt":
            m = re.search(r"vmcnt\((\d+)\)", text)
            if m:
                n = int(m.group(1)); self.vm = self.vm[len(self.vm) - n:] if n < len(self.vm) and n > 0 else ([] if n == 0 else self.vm)
            m = re.search(r"lgkmcnt\((\d+)\)", text)
            if m:
                n = int(m.group(1))
                if n == 0:
                    self.lg = []; self.smem = False; self.smem_regs = set()
                elif not self.smem and n < len(self.lg):
                    self.lg = self.lg[len(self.lg) - n:]
    def _count(self, q, pred):
        last = -1
        for i, e in enumerate(q):
            if pred(e): last = i
        return None if last < 0 else len(q) - 1 - last
    def wait(self, vm=None, lg=None, regs=None):
        rs = set(regs_of(regs)) if regs else set()
        vt = set([vm] if isinstance(vm, str) else (vm or []))
        lt = set([lg] if isinstance(lg, str) else (lg or []))
        parts = []
        n = self._count(self.vm, lambda e: e["tag"] in vt or e["regs"] & rs or "*" in vt)
        if n is not None:
            parts.append(f"vmcnt({min(n, 63)})")
        n = self._count(self.lg, lambda e: e["tag"] in lt or e["regs"] & rs or "*" in lt)
        if n is not None or (self.smem and ("*" in lt or self.smem_regs & rs)):
            if self.smem: n = 0
            parts.append(f"lgkmcnt({min(n, 15)})")
        if parts: self("s_waitcnt " + " ".join(parts))
    def snapshot(self):
        return (list(self.hist), [dict(e) for e in self.vm], [dict(e) for e in self.lg], self.smem, set(self.smem_regs))
    def restore(self, s):
        self.hist, self.vm, self.lg, self.smem, self.smem_regs = list(s[0]), [dict(e) for e in s[1]], [dict(e) for e in s[2]], s[3], set(s[4])
    def text(self): return "\n".join(self.lines) + "\n"

def vr(a, n=1): return f"v{a}" if n == 1 else f"v[{a}:{a+n-1}]"
def sr(a, n=1): return f"s{a}" if n == 1 else f"s[{a}:{a+n-1}]"
```

```python
import sys, math, struct
sys.path.insert(0, "gen")
from asmlib import Asm, vr, sr

NAME = "sequential_preLN__grouped_kv_mqa__dense_activation_relu__prompt"
def f32(x): return "0x%08x" % struct.unpack("<I", struct.pack("<f", x))[0]

WS_KVF, WS_HOP, WS_KV, WS_OF, WS_HFR, WS_HF, WS_DBG, WS_SIZE = 0x1000, 0x2000, 0x20000, 0x40000, 0x240000, 0x440000, 0xC00000, 0x1000000
XT, XP, WQ, WKV, KVS, BNC = 0, 1040, 66560, 132096, 148480, 152576
RING, SLOT, PAIR, ST1, ST2, FB = 65536, 7168, 137216, 158720, 159232, 159744
X, WQS, WKVS, WOS, W1S, W2S, OUTS, WSS = "s[8:11]", "s[12:15]", "s[16:19]", "s[20:23]", "s[24:27]", "s[28:31]", "s[32:35]", "s[36:39]"
sG, sJ, sW, sRT, sCT, sKH, sKQ, sTAG, sSAME, sONES, sCR0, sXCC, sCNT, sFB = ["s%d" % i for i in range(62, 76)]
sT0, sT1, sT2, sT3, sT4, sKV, sW2, sW1, sWO, sSL, sE = ["s%d" % i for i in range(76, 87)]
VMASK, M7 = "s[88:89]", "s[90:91]"
sHOPW = "s87"
TS0 = 40
vL16, vDMA, vW1D, vK, vV, vIDX, vTAG, vTR0, vTR1, vT0, vT1, vT2, vT3, vT4, vT5 = ["v%d" % i for i in range(1, 16)]
vLANE = "v0"
Q, S0, S1, O0, O1, KVR, XR = 16, 24, 40, 56, 72, 88, 136
W2R = 144
SPIN = 1 << 16

class Opt:
    diag = False; force_fb = False; force_slow = False; prio = True; kv_sc1 = True; npre = 6; wb = True

def gen(o):
    a = Asm()
    nts = [0]
    def ts():
        if o.diag:
            a(f"s_memtime s[98:99]\ns_waitcnt lgkmcnt(0)\ns_mov_b32 s{TS0+nts[0]}, s98"); nts[0] += 1
    uid = [0]
    def lab(p): uid[0] += 1; return f"L_{p}_{uid[0]}"
    def srd(d, p, n):
        a(f"s_mov_b32 s{d}, s{p}\ns_mov_b32 s{d+1}, s{p+1}\ns_mov_b32 s{d+2}, {hex(n)}\ns_mov_b32 s{d+3}, 0x20000")
    def dma(voff, s, soff, off=0, tag=None, sc1=False):
        a(f"buffer_load_dwordx4 {voff}, {s}, {soff} offen" + (f" offset:{off}" if off else "") + (" sc1" if sc1 else "") + " lds", tag=tag)
    def barrier():
        a.wait(lg="*"); a("s_barrier")
    def hop_stores(lines, tag):
        l1, l2 = lab("slow"), lab("join")
        a(f"s_cmp_eq_u32 {sSAME}, 0\ns_cbranch_scc1 {l1}")
        sn = a.snapshot()
        for t in lines: a(t, tag=tag)
        a(f"s_branch {l2}")
        a.label(l1); a.restore(sn)
        for t in lines: a(t + " sc1", tag=tag)
        a.label(l2)
    def poll(vaddr, soff, wide=False):
        l1, l2 = lab("poll"), lab("seen")
        a.wait(vm="*")
        a(f"s_mov_b32 {sCNT}, {SPIN}")
        a.label(l1)
        if wide: a(f"buffer_load_dwordx2 v[14:15], {vaddr}, {WSS}, {soff} offen sc1")
        else: a(f"buffer_load_dword {vT4}, {vaddr}, {WSS}, {soff} offen sc1")
        a("s_waitcnt vmcnt(0)")
        a(f"v_cmp_ne_u32 vcc, {sTAG}, {vT4}\ns_cbranch_vccz {l2}\ns_sub_u32 {sCNT}, {sCNT}, 1\ns_cbranch_scc0 {l1}")
        a.label(l2)
    def flag(hop):
        a.wait(vm="*")
        a("s_mov_b64 exec, 1")
        hop_stores([f"buffer_store_dword {vTAG}, off, {WSS}, {sHOPW} offset:0"], "flag")
        a("s_mov_b64 exec, -1")
        a(f"s_add_u32 {sHOPW}, {sHOPW}, 0x8000")
    def mfma(d, A, B, c): a(f"v_mfma_f32_32x32x16_bf16 {vr(d,16)}, {vr(A,4)}, {vr(B,4)}, {c}")
    def trrd(d, addr, off, tag=None): a(f"ds_read_b64_tr_b16 {vr(d,2)}, {addr} offset:{off}", tag=tag)
    def rd128(d, addr, off, tag=None): a(f"ds_read_b128 {vr(d,4)}, {addr} offset:{off}", tag=tag)
    def wr128(addr, s, off, tag=None): a(f"ds_write_b128 {addr}, {vr(s,4)} offset:{off}", tag=tag)
    def dot2(d, x, y): a(f"v_dot2_f32_bf16 {d}, {x}, {y}, {d}")
    def mu_rstd(s, q, t0, t1, scale):
        a(f"v_mul_f32 {t1}, {f32(-1/512)}, {s}\nv_mul_f32 {q}, {f32(1/512)}, {q}")
        a(f"v_fma_f32 {q}, -{t1}, {t1}, {q}\nv_max_f32 {q}, 0, {q}\nv_add_f32 {q}, {f32(1e-5)}, {q}\nv_rsq_f32 {q}, {q}")
        a(f"v_cvt_pk_bf16_f32 {s}, {t1}, {t1}\nv_lshlrev_b32 {s}, 16, {s}\nv_sub_f32 {t0}, {t1}, {s}\nv_cvt_pk_bf16_f32 {s}, {s}, {t0}")
        if scale != 1.0: a(f"v_mul_f32 {q}, {f32(scale)}, {q}")
    def ext_a(d, c0, c1):
        a(f"v_add_f32 {c0}, {c0}, {c1}\nv_cvt_pk_bf16_f32 v{d}, {c0}, {c0}\nv_lshlrev_b32 {c1}, 16, v{d}\nv_sub_f32 {c0}, {c0}, {c1}")
        a(f"v_cvt_pk_bf16_f32 v{d+1}, {c0}, {c0}\nv_mov_b32 v{d+2}, 0\nv_mov_b32 v{d+3}, 0")

    a("s_cmp_ge_u32 s2, 0x100\ns_cbranch_scc1 L_end")
    a("s_load_dwordx16 s[40:55], s[0:1], 0\ns_load_dwordx4 s[56:59], s[0:1], 64\ns_load_dwordx2 s[60:61], s[0:1], 80")
    if o.diag: a("s_memtime s[98:99]\ns_memrealtime s[94:95]")
    a("s_getpc_b64 s[96:97]")
    a.label("L_pc")
    a(f"v_lshrrev_b32 {vT0}, 6, v0\nv_and_b32 {vT1}, 7, v0\nv_lshl_add_u32 {vT1}, {vT0}, 3, {vT1}\ns_lshr_b32 {sT1}, s2, 3\ns_lshl_b32 {sT1}, {sT1}, 4")
    a(f"v_bfe_u32 {vT2}, v0, 3, 1\nv_lshl_add_u32 {vT2}, {vT0}, 1, {vT2}\nv_add_u32 {vT2}, {sT1}, {vT2}\nv_add_u32 {vT2}, 64, {vT2}")
    a(f"v_and_b32 v0, 63, v0\nv_cmp_gt_u32 vcc, 32, v0\nv_cndmask_b32 {vT1}, {vT2}, {vT1}, vcc\nv_lshlrev_b32 {vT1}, 7, {vT1}")
    a(f"v_min_u32 {vT1}, L_end-L_pc, {vT1}")
    a(f"global_load_dword v143, {vT1}, s[96:97]", tag="crit")
    a(f"v_readfirstlane_b32 {sW}, {vT0}")
    a(f"s_and_b32 {sG}, s2, 7\ns_lshl_b32 {sG}, {sG}, 2\ns_lshr_b32 {sT0}, s2, 6\ns_add_u32 {sG}, {sG}, {sT0}")
    a(f"s_lshr_b32 {sJ}, s2, 3\ns_and_b32 {sJ}, {sJ}, 7\ns_lshr_b32 {sCR0}, {sJ}, 1\ns_lshl_b32 {sCR0}, {sCR0}, 4")
    a(f"v_lshlrev_b32 {vL16}, 4, v0")
    a(f"s_and_b32 {sRT}, {sW}, 1\ns_lshr_b32 {sKQ}, {sW}, 1\ns_and_b32 {sCT}, {sKQ}, 1\ns_lshr_b32 {sKH}, {sW}, 2")
    a(f"s_lshl_b32 {sT0}, {sW}, 1\ns_add_u32 {sT0}, {sT0}, {sCR0}")
    a(f"s_lshl_b32 {sT2}, {sG}, 16\ns_lshl_b32 {sT1}, {sT0}, 10\ns_add_u32 {sT1}, {sT1}, {sT2}\ns_mul_i32 {sT0}, {sT0}, {XP}")
    a(f"s_lshl_b32 {sT3}, {sW}, 11\ns_bitcmp1_b32 {sJ}, 0")
    a("s_waitcnt lgkmcnt(0)")
    if o.diag: a("s_mov_b32 s100, s98\ns_mov_b32 s101, s94")
    a("s_cselect_b32 s44, s46, s44\ns_cselect_b32 s45, s47, s45")
    srd(8, 40, 0x200000); srd(16, 44, 0x4000)
    a(f"s_mov_b32 m0, {sT0}"); dma(vL16, X, sT1, tag="crit")
    a(f"s_add_u32 m0, {sT0}, {XP}\ns_add_u32 {sT1}, {sT1}, 1024"); dma(vL16, X, sT1, tag="crit")
    a(f"s_add_u32 m0, {sT3}, {WKV}"); dma(vL16, WKVS, sT3, tag="crit"); dma(vL16, WKVS, sT3, off=1024, tag="crit")
    srd(36, 60, WS_SIZE); srd(12, 42, 0x80000)
    a(f"s_load_dword {sE}, s[60:61], 0")
    a(f"s_mul_i32 {sT0}, {sW}, 6\ns_add_u32 {sT0}, {sT0}, {sCR0}\ns_add_u32 {sT0}, {sT0}, 16")
    for i in range(6):
        a(f"s_and_b32 {sT1}, {sT0}, 63\ns_mul_i32 m0, {sT1}, {XP}\ns_lshl_b32 {sT1}, {sT1}, 10\ns_add_u32 {sT1}, {sT1}, {sT2}")
        dma(vL16, X, sT1, tag="xrest")
        if i < 5: a(f"s_add_u32 {sT0}, {sT0}, 1")
    a(f"v_lshrrev_b32 {vT0}, 3, v0\nv_lshlrev_b32 {vT0}, 10, {vT0}\nv_lshrrev_b32 {vT1}, 2, v0\nv_and_b32 {vT1}, 4, {vT1}")
    a(f"v_and_b32 {vT2}, 7, v0\nv_xor_b32 {vT1}, {vT1}, {vT2}\nv_lshl_add_u32 {vDMA}, {vT1}, 4, {vT0}")
    a(f"s_lshl_b32 {sWO}, {sW}, 16\ns_lshl_b32 {sT1}, {sJ}, 7\ns_add_u32 {sWO}, {sWO}, {sT1}\ns_lshl_b32 {sSL}, {sW}, 13")
    for i in range(8):
        a(f"s_add_u32 m0, {sSL}, {WQ + 1024*i}\ns_add_u32 {sT1}, {sWO}, {8192*i}")
        dma(vDMA, WQS, sT1, tag="wq")
    srd(20, 48, 0x80000); srd(24, 52, 0x1C0000); srd(28, 54, 0x1C0000); srd(32, 56, 0x200000)
    a(f"s_mov_b32 {sONES}, 0x3f803f80\ns_mov_b32 s88, 0xffff\ns_mov_b32 s89, 0xffff")
    a(f"s_cmp_lt_u32 {sW}, 7\ns_cselect_b64 {M7}, -1, 0")
    a(f"s_getreg_b32 {sXCC}, hwreg(HW_REG_XCC_ID)\ns_and_b32 {sXCC}, {sXCC}, 15")
    a(f"v_mov_b32 {vIDX}, 0xdddddddd")
    a(f"v_and_b32 {vT0}, 15, v0\nv_lshlrev_b32 {vT0}, 4, {vT0}\nv_lshrrev_b32 {vT1}, 5, v0\nv_lshl_add_u32 {vV}, {vT1}, 8, {vT0}")
    a(f"v_bfe_u32 {vT2}, v0, 4, 1\nv_lshl_add_u32 {vK}, {vT2}, 9, {vV}")
    a(f"v_bfe_u32 {vT0}, v0, 2, 2\nv_lshl_add_u32 {vT3}, {vT1}, 2, {vT0}\nv_lshlrev_b32 {vT3}, 7, {vT3}")
    a(f"v_xor_b32 {vT4}, {sKQ}, {vT2}\nv_and_b32 {vT5}, 2, {vT0}\nv_xor_b32 {vT4}, {vT4}, {vT5}\nv_lshl_add_u32 {vT3}, {vT4}, 5, {vT3}")
    a(f"v_and_b32 {vT4}, 3, v0\nv_lshl_add_u32 {vTR0}, {vT4}, 3, {vT3}\nv_add_u32 {vTR0}, {sSL}, {vTR0}\nv_xor_b32 {vTR1}, 64, {vTR0}")
    a(f"s_lshl_b32 {sT1}, {sW}, 6\nv_add_u32 {vT3}, {sT1}, v0\nv_mul_u32_u24 {vT4}, 2341, {vT3}\nv_lshrrev_b32 {vT4}, 16, {vT4}")
    a(f"v_mul_u32_u24 {vT5}, {3584-448}, {vT4}\nv_lshl_add_u32 {vW1D}, {vT3}, 4, {vT5}")
    a(f"s_mul_i32 {sW1}, {sJ}, 448\ns_mul_i32 {sW2}, {sW}, {224*1024}\ns_lshl_b32 {sT1}, {sJ}, 7\ns_add_u32 {sW2}, {sW2}, {sT1}")
    a(f"s_lshl_b32 {sHOPW}, {sG}, 3\ns_add_u32 {sHOPW}, {sHOPW}, {sJ}\ns_lshl_b32 {sHOPW}, {sHOPW}, 5\ns_add_u32 {sHOPW}, {sHOPW}, {sW}")
    a(f"s_lshl_b32 {sHOPW}, {sHOPW}, 2\ns_add_u32 {sHOPW}, {sHOPW}, {WS_HOP}")

    aB, aA, aS = "v16", "v17", "v18"
    KB, KA, ON, DX, DC, DS = 20, 28, 36, 40, 44, 48
    a(f"v_and_b32 {vT0}, 15, v0\nv_add_u32 {vT1}, {sCR0}, {vT0}\nv_mul_u32_u24 {aB}, {XP}, {vT1}\nv_lshrrev_b32 {vT1}, 4, v0")
    a(f"s_lshl_b32 {sT1}, {sW}, 7\nv_lshl_add_u32 {aB}, {vT1}, 4, {aB}\nv_add_u32 {aB}, {sT1}, {aB}")
    a(f"v_lshlrev_b32 {vT0}, 3, {vT0}\nv_lshl_add_u32 {aA}, {vT1}, 8, {vT0}\ns_add_u32 {sT3}, {sT3}, {WKV}\nv_add_u32 {aA}, {sT3}, {aA}")
    for i in range(4): a(f"v_mov_b32 v{ON+i}, {sONES}")
    a(f"v_mov_b32 v{DS+1}, 0\nv_mov_b32 v19, 0")
    a.wait(vm="crit"); a("s_barrier"); ts()
    for i in range(2):
        rd128(KB+4*i, aB, 64*i); trrd(KA+4*i, aA, 1024*i); trrd(KA+4*i+2, aA, 1024*i+128)
    m16 = lambda d, A, B, c: a(f"v_mfma_f32_16x16x32_bf16 {vr(d,4)}, {vr(A,4)}, {vr(B,4)}, {c}")
    for i in range(2):
        a.wait(regs=f"{vr(KB+4*i,4)} {vr(KA+4*i,4)}")
        m16(DX, KA+4*i, KB+4*i, "0" if i == 0 else vr(DX,4))
        m16(DC, KA+4*i, ON, "0" if i == 0 else vr(DC,4))
        m16(52, ON, KB+4*i, "0" if i == 0 else vr(52,4))
        for r in range(4): dot2(f"v{DS+1}" if r & 1 else "v19", f"v{KB+4*i+r}", f"v{KB+4*i+r}")
    a(f"v_add_u32 {aA}, {sT3}, {vL16}\ns_lshl_b32 {sT1}, {sW}, 9\nv_lshlrev_b32 {aS}, 3, v0\nv_add_u32 {vT0}, {sT1}, {aS}\nv_add_u32 {vT0}, {KVS}, {vT0}")
    a(f"v_add_f32 v{DS+1}, v{DS+1}, v19\nv_mov_b32 v{DS}, v52")
    wr128(aA, DX, 0); wr128(aA, DC, 1024)
    a(f"ds_write_b64 {vT0}, {vr(DS,2)}")
    barrier()
    a(f"s_cmp_lg_u32 {sW}, 0\ns_cbranch_scc1 L_nofin")
    sn = a.snapshot()
    a(f"v_add_u32 {aS}, {KVS}, {aS}")
    P = 56
    for k in range(1, 8):
        b = P + 10*(k-1)
        rd128(b, aA, 2048*k); rd128(b+4, aA, 2048*k+1024); a(f"ds_read_b64 {vr(b+8,2)}, {aS} offset:{512*k}")
        if k == 4: a.wait(regs=vr(P, 20))
    a(f"v_and_b32 {vT0}, 15, v0\nv_lshrrev_b32 {vT1}, 4, v0\nv_and_b32 {vT2}, 1, {vT1}\nv_lshlrev_b32 {vT2}, 8, {vT2}\nv_lshl_add_u32 {vT2}, {vT0}, 4, {vT2}")
    a(f"v_lshrrev_b32 {vT3}, 1, {vT1}\nv_lshl_add_u32 {vT2}, {vT3}, 3, {vT2}")
    a(f"v_lshrrev_b32 {vT3}, 3, {vT0}\nv_lshlrev_b32 {vT3}, 8, {vT3}\nv_lshl_add_u32 {vT3}, {vT1}, 6, {vT3}\nv_and_b32 {vT0}, 7, {vT0}\nv_lshl_add_u32 {vT3}, {vT0}, 1, {vT3}")
    a(f"s_bitcmp1_b32 {sJ}, 0\ns_cselect_b64 vcc, -1, 0\ns_cselect_b32 {sT1}, 16, 2")
    a(f"v_cndmask_b32 v20, {vT2}, {vT3}, vcc\nv_add_u32 v20, {BNC}, v20\nv_add_u32 v21, {sT1}, v20\nv_add_u32 v22, {sT1}, v21\nv_add_u32 v23, {sT1}, v22")
    for k in range(1, 8):
        b = P + 10*(k-1)
        a.wait(regs=vr(b, 10))
        for r in range(0, 10, 2): a(f"v_pk_add_f32 {vr(DX+r,2)}, {vr(DX+r,2)}, {vr(b+r,2)}")
    q = f"v{DS+1}"
    a(f"v_mov_b32 {vT0}, {q}\nv_permlane32_swap_b32 {vT0}, {q}\nv_add_f32 {q}, {q}, {vT0}\nv_mov_b32 {vT0}, {q}\nv_permlane16_swap_b32 {vT0}, {q}\nv_add_f32 {q}, {q}, {vT0}")
    mu_rstd(f"v{DS}", q, vT0, vT1, 1.0)
    for r in range(4): a(f"v_fma_f32 v{DX+r}, {vT1}, v{DC+r}, v{DX+r}")
    for r in range(4): a(f"v_mul_f32 v{DX+r}, {q}, v{DX+r}")
    a(f"v_cvt_pk_bf16_f32 v{DX}, v{DX}, v{DX+1}\nv_cvt_pk_bf16_f32 v{DX+2}, v{DX+2}, v{DX+3}")
    a(f"ds_write_b16 v20, v{DX}\nds_write_b16_d16_hi v21, v{DX}\nds_write_b16 v22, v{DX+2}\nds_write_b16_d16_hi v23, v{DX+2}")
    a(f"v_add_u32 {vT0}, {BNC}, {vL16}")
    a(f"s_lshl_b32 {sT1}, {sG}, 12\ns_lshr_b32 {sT0}, {sJ}, 2\ns_lshl_b32 {sT0}, {sT0}, 11\ns_add_u32 {sT1}, {sT1}, {sT0}")
    a(f"s_bfe_u32 {sT0}, {sJ}, 0x10001\ns_lshl_b32 {sT0}, {sT0}, 9\ns_add_u32 {sT1}, {sT1}, {sT0}\ns_and_b32 {sT0}, {sJ}, 1\ns_lshl_b32 {sT0}, {sT0}, 10")
    a(f"s_add_u32 {sT1}, {sT1}, {sT0}\ns_add_u32 {sT1}, {sT1}, {WS_KV}")
    a("s_waitcnt lgkmcnt(0)\ns_mov_b64 exec, 0xffffffff")
    rd128(24, vT0, 0); a.wait(lg="*")
    a(f"buffer_store_dwordx4 v[24:27], {vL16}, {WSS}, {sT1} offen sc1", tag="kvst")
    a("s_mov_b64 exec, -1")
    a.wait(vm="xrest")
    a("s_branch L_fin")
    fin = a.snapshot()
    a.label("L_nofin"); a.restore(sn)
    a.wait(vm="xrest")
    a.label("L_fin")
    nf = len(a.vm); a.restore(fin); a.vm = a.vm[:nf]; a.fence()
    a("s_nop 1\ns_barrier"); ts()

    a(f"v_lshrrev_b32 {vT0}, 3, v0\ns_lshl_b32 {sT0}, {sW}, 3\nv_add_u32 {vT0}, {sT0}, {vT0}\nv_mul_u32_u24 v16, {XP}, {vT0}")
    a(f"v_and_b32 {vT1}, 7, v0\nv_lshl_add_u32 v16, {vT1}, 4, v16\nv_lshlrev_b32 v17, 3, {vT0}\nv_add_u32 v17, {ST1}, v17")
    for i in range(8): rd128(24+4*i, "v16", 128*i)
    for r in range(18, 22): a(f"v_mov_b32 v{r}, 0")
    qA, qB = "v56", "v57"
    a(f"s_xor_b32 {sT0}, {sKQ}, {sKH}\ns_and_b32 {sT0}, {sT0}, 1\ns_lshl_b32 {sT1}, {sCT}, 1\ns_or_b32 {sT1}, {sT1}, {sKH}")
    a(f"v_bfe_u32 {vT0}, v0, 2, 2\nv_lshrrev_b32 {vT1}, 5, v0\nv_lshl_add_u32 {vT2}, {vT1}, 3, {vT0}\nv_lshlrev_b32 {vT2}, 7, {vT2}")
    a(f"v_bfe_u32 {vT3}, v0, 4, 1\nv_xor_b32 {vT3}, {sT1}, {vT3}\nv_and_b32 {vT0}, 2, {vT0}\nv_xor_b32 {vT3}, {vT3}, {vT0}\nv_lshl_add_u32 {vT2}, {vT3}, 5, {vT2}")
    a(f"v_and_b32 {vT3}, 3, v0\nv_lshl_add_u32 {qA}, {vT3}, 3, {vT2}\ns_lshl_b32 {sT0}, {sKH}, 15\ns_add_u32 {sT0}, {sT0}, {WQ}\nv_add_u32 {qA}, {sT0}, {qA}")
    a(f"v_and_b32 {vT0}, 31, v0\ns_lshl_b32 {sT0}, {sRT}, 5\nv_add_u32 {vT0}, {sT0}, {vT0}\nv_mul_u32_u24 v58, {XP}, {vT0}\nv_lshlrev_b32 v59, 3, {vT0}\nv_add_u32 v59, {ST1}, v59")
    a(f"v_lshl_add_u32 {qB}, {vT1}, 4, v58\ns_lshl_b32 {sT0}, {sKH}, 9\nv_add_u32 {qB}, {sT0}, {qB}")
    a(f"v_lshl_add_u32 v58, {vT1}, 3, v58\ns_lshl_b32 {sT0}, {sJ}, 7\ns_lshl_b32 {sT1}, {sKQ}, 5\ns_add_u32 {sT0}, {sT0}, {sT1}\nv_add_u32 v58, {sT0}, v58")
    for i in range(8):
        a.wait(regs=vr(24+4*i, 4))
        for r in range(4):
            dot2(f"v{18+(r&1)}", f"v{24+4*i+r}", sONES); dot2(f"v{20+(r&1)}", f"v{24+4*i+r}", f"v{24+4*i+r}")
    a(f"ds_read_b64 {vr(XR,2)}, v58\nds_read_b64 {vr(XR+2,2)}, v58 offset:16")
    a("v_add_f32 v18, v18, v19\nv_add_f32 v19, v20, v21")
    for m in ("quad_perm:[1,0,3,2]", "quad_perm:[2,3,0,1]", "row_half_mirror"):
        a(f"v_add_f32_dpp v18, v18, v18 {m} row_mask:0xf bank_mask:0xf\nv_add_f32_dpp v19, v19, v19 {m} row_mask:0xf bank_mask:0xf")
    mu_rstd("v18", "v19", vT0, vT1, 0.25 * math.log2(math.e))
    a("ds_write_b64 v17, v[18:19]")
    a(f"s_mul_i32 {sTAG}, {sE}, 0x9e3779b1\ns_add_u32 {sTAG}, {sTAG}, 0x7f4a7c15\nv_mov_b32 {vTAG}, {sTAG}")
    a(f"s_waitcnt vmcnt(1)\ns_cmp_eq_u32 {sW}, 0\ns_cbranch_scc1 L_w0\ns_waitcnt vmcnt(0)")
    a.label("L_w0")
    barrier(); ts()

    QD, QF, C0, C1, EA, EB = 24, 64, "v60", "v61", 40, 44
    def qread(ks):
        b = QF + 8*(ks % 6)
        trrd(b, qA, 2048*ks); trrd(b+2, qA, 2048*ks+512); rd128(b+4, qB, 32*ks)
    for ks in range(4): qread(ks)
    a(f"ds_read_b64 v[62:63], v59\nv_mov_b32 {C0}, 0\nv_mov_b32 {C1}, 0")
    for ks in range(16):
        b = QF + 8*(ks % 6)
        a.wait(regs=vr(b, 8))
        mfma(QD, b, b+4, "0" if ks == 0 else vr(QD,16))
        if ks + 4 < 16: qread(ks+4)
        for r in range(4): dot2(C1 if r & 1 else C0, f"v{b+r}", sONES)
        if ks == 9:
            a(f"s_cmp_lg_u32 {sW}, 0\ns_cbranch_scc1 L_noflag")
            a(f"s_lshl_b32 {sT0}, {sG}, 3\ns_add_u32 {sT0}, {sT0}, {sJ}\ns_lshl_b32 {sT0}, {sT0}, 4\ns_add_u32 {sT0}, {sT0}, {WS_KVF}")
            a(f"v_mov_b32 {vT4}, {sTAG}\nv_mov_b32 {vT5}, {sXCC}\ns_mov_b64 exec, 1\ns_waitcnt vmcnt(0)")
            a(f"buffer_store_dwordx2 v[14:15], off, {WSS}, {sT0} sc1\ns_mov_b64 exec, -1")
            a.label("L_noflag")
    ext_a(EA, C0, C1)
    a(f"v_mov_b32 v{EB}, v62\nv_mov_b32 v{EB+1}, v62\nv_mov_b32 v{EB+2}, 0\nv_mov_b32 v{EB+3}, 0")
    mfma(QD, EA, EB, vr(QD,16))
    a(f"s_xor_b32 {sT0}, {sSL}, 0x8000\nv_add_u32 {vT0}, {sT0}, {vL16}\nv_add_u32 {vT1}, {sSL}, {vL16}")
    a(f"s_lshl_b32 {sT0}, {sW}, 5\nv_add_u32 {vT2}, {sT0}, v0\ns_lshl_b32 {sT0}, {sG}, 3\nv_and_b32 {vT3}, 7, v0\nv_add_u32 {vT3}, {sT0}, {vT3}")
    a(f"v_cmp_gt_u32 vcc, 32, v0\nv_cndmask_b32 {vT2}, {vT3}, {vT2}, vcc\nv_lshlrev_b32 {vT2}, 4, {vT2}\ns_mov_b32 {sT4}, {WS_KVF}")
    barrier()
    for i in range(4): wr128(vT0, QD+4*i, 1024*i)
    for r in range(32): a(f"v_mov_b32 v{O0+r}, 0") if r not in (6, 7) else None
    for s_ in range(4):
        for r in range(4, 12): a(f"v_mov_b32 v{KVR+12*s_+r}, {sONES}")
    ts()
    poll(vT2, sT4, wide=True)
    a(f"v_cmp_ne_u32 vcc, {sXCC}, {vT5}\ns_nop 1\ns_cmp_eq_u32 vcc_hi, 0\ns_cselect_b32 {sSAME}, {0 if o.force_slow else 1}, 0")
    barrier(); ts()
    sc = " sc1" if o.kv_sc1 else ""
    a(f"s_lshl_b32 {sKV}, {sKH}, 16\ns_add_u32 {sKV}, {sKV}, {WS_KV}")
    def kvload(t):
        b = KVR + 12*(t % 4); off = 2048*(t & 1)
        a(f"buffer_load_dwordx4 {vr(b,4)}, {vK}, {WSS}, {sKV} offen offset:{off}{sc}")
        a(f"s_mov_b64 exec, {VMASK}")
        a(f"buffer_load_dwordx4 {vr(b+4,4)}, {vV}, {WSS}, {sKV} offen offset:{off+1024}{sc}")
        a(f"buffer_load_dwordx4 {vr(b+8,4)}, {vV}, {WSS}, {sKV} offen offset:{off+1536}{sc}")
        a("s_mov_b64 exec, -1")
        if t & 1: a(f"s_add_u32 {sKV}, {sKV}, 4096")
    for i in range(4): rd128(S1+4*i, vT1, 1024*i)
    for t in range(3): kvload(t)
    a.wait(lg="*")
    for r in range(0, 16, 2): a(f"v_pk_add_f32 {vr(QD+r,2)}, {vr(QD+r,2)}, {vr(S1+(r^8),2)}")
    for r in range(16): a(f"v_mul_f32 v{QD+r}, v63, v{QD+r}")
    for r in range(8): a(f"v_cvt_pk_bf16_f32 v{Q+r}, v{QD+2*r}, v{QD+2*r+1}")
    a("v_mov_b32 v62, 0\nv_mov_b32 v63, 0")

    def smf(h, t, u, S):
        O = O1 if h else O0
        a(f"v_smfmac_f32_32x32x32_bf16 {vr(O,16)}, {vr(KVR+12*(t%4)+4+4*u,4)}, {vr(S+8*u,8)}, {vIDX}")
    def qk(n):
        t, h = n >> 1, n & 1
        mfma(S1 if n & 1 else S0, KVR+12*(t%4), Q+4*h, "0")
    side = {n: [] for n in range(64)}
    def w2dma(r, i):
        def f():
            a(f"s_add_u32 m0, {sSL}, {4096*(r&1)+1024*i}\ns_add_u32 {sT1}, {sW2}, {8192*(4*r+i)}")
            dma(vDMA, W2S, sT1, tag=f"w2_{r}")
        return f
    def w2rd(r, k):
        def f():
            a.wait(vm=f"w2_{r}")
            ks = 2*r + k
            for tau, ad in ((0, vTR0), (1, vTR1)):
                d = W2R + 56*tau + 4*ks
                trrd(d, ad, 4096*(r&1) + 2048*k, tag=f"w2r_{r}"); trrd(d+2, ad, 4096*(r&1) + 2048*k + 1024, tag=f"w2r_{r}")
        return f
    def wodma(i):
        def f():
            a(f"s_add_u32 m0, {sSL}, {1024*i}\ns_add_u32 {sT1}, {sWO}, {8192*i}")
            dma(vDMA, WOS, sT1, tag="wo")
        return f
    def w1dma(ks, slot, tag="w1"):
        a(f"s_add_u32 m0, {sT3}, {RING + SLOT*slot}\ns_add_u32 {sT1}, {sW1}, {57344*ks}\ns_mov_b64 exec, {M7}")
        dma(vW1D, W1S, sT1, tag=tag)
        a("s_mov_b64 exec, -1")
    def w1pre():
        a(f"s_lshr_b32 {sT0}, s2, 6\ns_lshl_b32 {sT0}, {sT0}, 3\ns_add_u32 {sT0}, {sT0}, {sW}\ns_mul_i32 {sT0}, {sT0}, 11\ns_add_u32 {sT0}, {sT0}, 160")
        a(f"s_mul_i32 {sT0}, {sT0}, 3584\ns_and_b32 {sT1}, {sW1}, 0xffffff80\ns_add_u32 {sT0}, {sT0}, {sT1}")
        a(f"v_lshrrev_b32 {vT0}, 2, v0\nv_min_u32 {vT0}, 10, {vT0}\nv_mul_u32_u24 {vT0}, 3584, {vT0}\nv_and_b32 {vT1}, 3, v0\nv_lshl_add_u32 {vT0}, {vT1}, 7, {vT0}")
        a(f"buffer_load_dword v143, {vT0}, {W1S}, {sT0} offen", tag="w1")
    a(f"s_lshl_b32 {sT3}, {sW}, 10")
    for r in range(7):
        for i in range(4):
            if i == 0 and r >= 2: side[6*r].append((lambda r: lambda: a.wait(lg=f"w2r_{r-2}"))(r))
            side[6*r + i].append(w2dma(r, i))
        side[6*r + 9].append(w2rd(r, 0)); side[6*r + 10].append(w2rd(r, 1))
    side[48].append(lambda: a.wait(lg="*"))
    for i in range(8): side[48 + i].append(wodma(i))
    for ks in range(10): side[6*(ks//2) + 4 + (ks & 1) + 6].append((lambda ks: lambda: w1dma(ks, ks))(ks))
    side[44].append(w1pre)
    a.wait(regs=vr(KVR, 4))
    qk(0)
    for n in range(64):
        t, h = n >> 1, n & 1
        S = S1 if n & 1 else S0; Sp = S0 if n & 1 else S1
        e = lambda r: a(f"v_exp_f32 v{S+r}, v{S+r}")
        if o.prio and n in (0, 16, 32, 48): a(f"s_setprio {3 - n//16}")
        e(0); e(1)
        if n > 0: smf(h ^ 1, (n-1) >> 1, 1, Sp)
        if h == 0 and t + 3 < 32: kvload(t + 3)
        e(2); e(3); e(4)
        if n < 63:
            if h == 1: a.wait(regs=vr(KVR+12*((t+1)%4), 4))
            qk(n + 1)
        for r in range(5, 10): e(r)
        if h == 0: a.wait(regs=vr(KVR+12*(t%4)+4, 8))
        smf(h, t, 0, S)
        for f in side[n]: f()
        for r in range(10, 16): e(r)
    smf(1, 31, 1, S1)
    a(f"s_mov_b32 {sFB}, 0")
    ts()
    a.label("L_attn_done"); a.fence(); a("s_nop 11")
    a(f"s_mul_i32 {sT0}, {sW}, 2304\ns_add_u32 {sT0}, {sT0}, {PAIR}\nv_add_u32 {vT0}, {sT0}, {vL16}\nv_lshlrev_b32 {vT1}, 2, v0\nv_add_u32 {vT2}, {sT0}, {vT1}")
    wr128(vT0, O1, 0); wr128(vT0, O1+4, 1024); a(f"ds_write_b32 {vT2}, v{O1+8} offset:2048")
    T = S0
    for r in range(0, 8, 2): a(f"v_pk_add_f32 {vr(T+r,2)}, {vr(O0+r,2)}, {vr(O1+r,2)}")
    a(f"v_pk_add_f32 {vr(T,2)}, {vr(T,2)}, {vr(T+2,2)}\nv_pk_add_f32 {vr(T+4,2)}, {vr(T+4,2)}, {vr(T+6,2)}\nv_pk_add_f32 {vr(T,2)}, {vr(T,2)}, {vr(T+4,2)}\nv_add_f32 v{T}, v{T}, v{T+1}")
    lo, hi = (2.0**-60, 2.0**60) if not o.force_fb else (2.0**60, 2.0**61)
    a(f"v_max_f32 v{T+1}, v{O0+8}, v{O1+8}\nv_min_f32 v{T+2}, v{O0+8}, v{O1+8}\nv_add_f32 v{T+3}, v{O0+8}, v{O1+8}\nv_fma_f32 v{T}, v{T}, 0, v{T+3}")
    a(f"v_cmp_nge_f32 vcc, {f32(hi)}, v{T+1}\ns_mov_b64 s[92:93], vcc\nv_cmp_nle_f32 vcc, {f32(lo)}, v{T+2}\ns_or_b64 s[92:93], s[92:93], vcc")
    a(f"v_cmp_u_f32 vcc, v{T}, v{T}\ns_or_b64 s[92:93], s[92:93], vcc\ns_cselect_b32 {sT1}, 1, 0\ns_andn2_b32 {sT1}, {sT1}, {sFB}")
    a(f"s_lshl_b32 {sT2}, {sW}, 2\ns_add_u32 {sT2}, {sT2}, {FB}\nv_mov_b32 {vT3}, {sT2}\nv_mov_b32 {vT4}, {sT1}\nds_write_b32 {vT3}, {vT4}")
    a(f"s_xor_b32 {sT1}, {sW}, 4\ns_mul_i32 {sT0}, {sT1}, 2304\ns_add_u32 {sT0}, {sT0}, {PAIR}\nv_add_u32 {vT0}, {sT0}, {vL16}\nv_add_u32 {vT2}, {sT0}, {vT1}")
    a(f"v_and_b32 {vT1}, 28, {vT1}\nv_add_u32 {vT1}, {FB}, {vT1}")
    a("s_waitcnt vmcnt(0)")
    barrier()
    a(f"ds_read_b32 {vT4}, {vT1}")
    rd128(T, vT0, 0); rd128(T+4, vT0, 1024); a(f"ds_read_b32 v{T+8}, {vT2} offset:2048")
    a(f"s_lshl_b32 {sT0}, {sG}, 1\ns_add_u32 {sT0}, {sT0}, {sRT}\ns_lshl_b32 {sT4}, {sT0}, 15")
    a(f"s_lshl_b32 {sT0}, {sJ}, 1\ns_add_u32 {sT0}, {sT0}, {sCT}\ns_lshl_b32 {sT0}, {sT0}, 1\ns_add_u32 {sT0}, {sT0}, {sKH}\ns_lshl_b32 {sT0}, {sT0}, 10")
    a(f"s_add_u32 {sT0}, {sT0}, {sT4}\ns_add_u32 {sT0}, {sT0}, {WS_OF}")
    a.wait(regs=vT4)
    a(f"v_cmp_ne_u32 vcc, 0, {vT4}\ns_cbranch_vccnz L_fallback")
    a.wait(lg="*")
    a(f"v_add_f32 v{T+8}, v{T+8}, v{O0+8}\nv_rcp_f32 v{T+8}, v{T+8}")
    for r in range(0, 8, 2): a(f"v_pk_add_f32 {vr(T+r,2)}, {vr(T+r,2)}, {vr(O0+r,2)}")
    for r in range(8): a(f"v_mul_f32 v{T+r}, v{T+8}, v{T+r}")
    for r in range(4): a(f"v_cvt_pk_bf16_f32 v{80+r}, v{T+2*r}, v{T+2*r+1}")
    hop_stores([f"buffer_store_dwordx4 v[80:83], {vL16}, {WSS}, {sT0} offen"], "ost")
    if o.prio: a("s_setprio 0")

    PA, PB, D0, D1, HK = 16, 80, 112, 128, 140
    a(f"s_lshl_b32 {sT0}, {sRT}, 13\nv_subrev_u32 {vT0}, {sT0}, {vTR0}\nv_subrev_u32 {vT1}, {sT0}, {vTR1}")
    for ks in range(8):
        for tau, ad in ((0, vT0), (1, vT1)):
            d = PA + 32*tau + 4*ks
            trrd(d, ad, 2048*ks); trrd(d+2, ad, 2048*ks + 1024)
        if ks == 2: a.wait(lg="*")
        if ks == 5: a.wait(lg="*")
    for r in range(4): a(f"v_lshlrev_b32 v{D0+2*r}, 16, v{XR+r}\nv_and_b32 v{D0+2*r+1}, 0xffff0000, v{XR+r}")
    for r in range(8, 16): a(f"v_mov_b32 v{D0+r}, 0")
    a(f"s_cmp_lg_u32 s2, 0\ns_cbranch_scc1 L_noepoch\ns_cmp_lg_u32 {sW}, 0\ns_cbranch_scc1 L_noepoch")
    a(f"s_mov_b64 exec, 1\nbuffer_store_dword {vTAG}, off, {WSS}, 0\ns_mov_b64 exec, -1")
    a.label("L_noepoch")
    flag(0)
    a(f"v_bfe_u32 {vT2}, v0, 2, 1\nv_lshlrev_b32 {vT2}, 7, {vT2}\nv_and_b32 {vT3}, 3, v0\nv_lshl_add_u32 {vT2}, {vT3}, 3, {vT2}")
    a(f"s_lshl_b32 {sT0}, {sG}, 10\ns_lshl_b32 {sT1}, {sKQ}, 8\ns_add_u32 {sT0}, {sT0}, {sT1}\ns_lshl_b32 {sT1}, {sRT}, 2\ns_add_u32 {sT0}, {sT0}, {sT1}\ns_add_u32 {sT0}, {sT0}, {WS_HOP}")
    a(f"s_lshl_b32 {sT1}, {sKQ}, 13\ns_add_u32 {sT1}, {sT1}, {sT4}\ns_add_u32 {sT1}, {sT1}, {WS_OF}\ns_add_u32 {sT2}, {sT1}, 4096")
    barrier(); ts()
    poll(vT2, sT0); ts()
    for i in range(8): a(f"buffer_load_dwordx4 {vr(PB+4*i,4)}, {vL16}, {WSS}, {sT2 if i >= 4 else sT1} offen offset:{1024*(i&3)} sc1")
    for ks in range(10, 13): w1dma(ks, ks)
    a(f"s_lshl_b32 {sT0}, {sW}, 11\nv_add_u32 {vT0}, {sT0}, {vL16}")
    for sg in range(1, 4): a(f"v_xor_b32 v{10+sg}, {4096*sg}, {vT0}")
    for i in range(8):
        a.wait(regs=vr(PB+4*i, 4))
        mfma(D1, PA+32+4*i, PB+4*i, "0" if i == 0 else vr(D1,16))
        mfma(D0, PA+4*i, PB+4*i, vr(D0,16))
    wr128(vT0, D1, 16384); wr128(vT0, D1+4, 16384+1024); wr128(vT0, D1+8, 32768); wr128(vT0, D1+12, 32768+1024)
    wr128(vT0, D0+8, 0); wr128(vT0, D0+12, 1024)
    a(f"s_lshl_b32 {sT0}, {sJ}, 2\ns_add_u32 {sT0}, {sT0}, {sKQ}\ns_lshl_b32 {sT0}, {sT0}, 10\ns_add_u32 {sT0}, {sT0}, {sT4}\ns_add_u32 {sT0}, {sT0}, {WS_HFR}")
    a.wait(vm="*")
    barrier()
    for sg in range(1, 4):
        rd128(PB+8*(sg-1), f"v{10+sg}", 16384*(sg-1)); rd128(PB+8*(sg-1)+4, f"v{10+sg}", 16384*(sg-1)+1024)
    for sg in range(3):
        a.wait(regs=vr(PB+8*sg, 8))
        for r in range(0, 8, 2): a(f"v_pk_add_f32 {vr(D0+r,2)}, {vr(D0+r,2)}, {vr(PB+8*sg+r,2)}")
    for r in range(4): a(f"v_cvt_pk_bf16_f32 v{HK+r}, v{D0+2*r}, v{D0+2*r+1}")
    hop_stores([f"buffer_store_dwordx4 {vr(HK,4)}, {vL16}, {WSS}, {sT0} offen"], "hst")

    FD, FA, FBs, EA = 16, 48, 96, 132
    C0, C1, fA, fA2, fS = "v128", "v129", "v130", "v131", "v136"
    a(f"v_bfe_u32 {vT0}, v0, 2, 2\nv_lshrrev_b32 {vT1}, 5, v0\nv_lshl_add_u32 {vT0}, {vT1}, 2, {vT0}\nv_mul_u32_u24 {vT0}, 448, {vT0}")
    a(f"v_bfe_u32 {vT1}, v0, 4, 1\nv_lshl_add_u32 {vT0}, {vT1}, 5, {vT0}\nv_and_b32 {vT1}, 3, v0\nv_lshl_add_u32 {vT0}, {vT1}, 3, {vT0}")
    a(f"s_min_u32 {sT0}, {sW}, 6\ns_lshl_b32 {sT0}, {sT0}, 6\ns_add_u32 {sT0}, {sT0}, {RING}\nv_add_u32 {fA}, {sT0}, {vT0}\nv_add_u32 {fA2}, {8*SLOT}, {fA}")
    slot_of = lambda ks: ks if ks <= 12 else (ks - 13 if ks <= 24 else (12 if ks == 25 else ks - 26))
    def aread(ks):
        sl = slot_of(ks); ad, off = (fA, SLOT*sl) if sl < 8 else (fA2, SLOT*(sl-8))
        d = FA + 4*(ks % 12)
        trrd(d, ad, off); trrd(d+2, ad, off + 8*448)
    for ks in range(12):
        aread(ks)
        if ks == 6: a.wait(lg="*")
    flag(1)
    a(f"v_and_b32 {vT2}, 7, v0\nv_lshlrev_b32 {vT2}, 2, {vT2}\nv_and_b32 {vT0}, 31, v0\nv_lshlrev_b32 {fS}, 3, {vT0}\nv_add_u32 {fS}, {ST2}, {fS}")
    a(f"s_lshl_b32 {sT0}, {sG}, 3\ns_add_u32 {sT0}, {sT0}, {sW}\ns_lshl_b32 {sT0}, {sT0}, 7\ns_add_u32 {sT0}, {sT0}, {WS_HOP + 0x8000}")
    a(f"v_mov_b32 {C0}, 0\nv_mov_b32 {C1}, 0")
    barrier(); ts()
    for ks in range(13, 13 + o.npre): w1dma(ks, slot_of(ks), tag="w1a")
    poll(vT2, sT0); ts()
    a(f"s_lshl_b32 {sT1}, {sG}, 16\ns_lshl_b32 {sT2}, {sW}, 12\ns_add_u32 {sT1}, {sT1}, {sT2}\ns_add_u32 {sT1}, {sT1}, {WS_HFR}\ns_mov_b32 m0, {sT2}")
    for i in range(4): dma(vL16, WSS, sT1, off=1024*i, tag="h", sc1=True)
    a(f"s_add_u32 {sT1}, {sT1}, 0x8000\ns_add_u32 m0, {sT2}, 0x8000")
    for i in range(4): dma(vL16, WSS, sT1, off=1024*i, tag="h", sc1=True)
    for ks in range(13 + o.npre, 25): w1dma(ks, slot_of(ks), tag="w1b")
    a.wait(vm="h"); a("s_barrier"); ts()
    a(f"s_cmp_eq_u32 {sW}, 7\ns_cbranch_scc1 L_stats")
    sn = a.snapshot()
    def bread(ks):
        d = FBs + 8*(ks % 4)
        rd128(d, vL16, 1024*ks); rd128(d+4, vL16, 32768 + 1024*ks)
    for ks in range(3): bread(ks)
    Z1, Z2 = 8, 21
    assert o.npre >= 6
    nxt = 12
    for ks in range(32):
        if ks == Z1:
            a.wait(vm="w1b"); barrier()
            for k2 in range(25, 32): w1dma(k2, slot_of(k2), tag="w1c")
        if ks == Z2:
            a.wait(vm="w1c"); a("s_barrier")
        A = FA + 4*(ks % 12); B = FBs + 8*(ks % 4)
        a.wait(regs=f"{vr(A,4)} {vr(B,8)}")
        mfma(FD, A, B, "0" if ks == 0 else vr(FD,16))
        if ks + 3 < 32: bread(ks + 3)
        dot2(C0, f"v{A}", sONES); dot2(C1, f"v{A+1}", sONES)
        mfma(FD+16, A, B+4, "0" if ks == 0 else vr(FD+16,16))
        dot2(C0, f"v{A+2}", sONES); dot2(C1, f"v{A+3}", sONES)
        lim = 12 + o.npre if ks < Z1 else (24 if ks < Z2 else 31)
        cnt = 0
        while nxt <= min(lim, ks + 12) and cnt < 2: aread(nxt); nxt += 1; cnt += 1
    assert nxt == 32
    a("s_barrier")
    a(f"ds_read_b32 v{FBs}, {fS}\nds_read_b32 v{FBs+1}, {fS}\nds_read_b32 v{FBs+4}, {fS} offset:256\nds_read_b32 v{FBs+5}, {fS} offset:256")
    ext_a(EA, C0, C1)
    for r in (2, 3, 6, 7): a(f"v_mov_b32 v{FBs+r}, 0")
    a(f"s_mul_i32 {sT0}, {sG}, {224*1024}\ns_mul_i32 {sT1}, {sJ}, {14*1024}\ns_add_u32 {sT0}, {sT0}, {sT1}\ns_lshl_b32 {sT1}, {sW}, 11\ns_add_u32 {sT0}, {sT0}, {sT1}")
    a(f"s_add_u32 {sT0}, {sT0}, {WS_HF}\ns_add_u32 {sT1}, {sT0}, {112*1024}")
    a.wait(lg="*")
    mfma(FD, EA, FBs, vr(FD,16)); mfma(FD+16, EA, FBs+4, vr(FD+16,16))
    for rt in range(2):
        for r in range(8): a(f"v_cvt_pk_bf16_f32 v{FA+8*rt+r}, v{FD+16*rt+2*r}, v{FD+16*rt+2*r+1}")
        for r in range(8): a(f"v_pk_max_i16 v{FA+8*rt+r}, v{FA+8*rt+r}, 0")
        hop_stores([f"buffer_store_dwordx4 {vr(FA+8*rt+4*u,4)}, {vL16}, {WSS}, {sT1 if rt else sT0} offen offset:{1024*u}" for u in range(2)], "hf")
    flag(2)
    a("s_branch L_ffn1_done")
    done = a.snapshot()
    a.label("L_stats"); a.restore(sn)
    for r in range(8): a(f"v_mov_b32 v{FD+r}, 0")
    sread = lambda i: rd128(FA + 4*(i % 12), vL16, 1024*i)
    for i in range(8): sread(i)
    for i in range(64):
        if i == 14: a("s_barrier")
        if i == 44: a("s_barrier")
        b = FA + 4*(i % 12); c = FD + 4*(i >> 5)
        a.wait(regs=vr(b, 4))
        for r in range(4): dot2(f"v{c+(r&1)}", f"v{b+r}", sONES); dot2(f"v{c+2+(r&1)}", f"v{b+r}", f"v{b+r}")
        if i + 8 < 64: sread(i + 8)
    for rt in range(2):
        c = FD + 4*rt
        a(f"v_add_f32 v{c}, v{c}, v{c+1}\nv_add_f32 v{c+1}, v{c+2}, v{c+3}\nv_mov_b32 v{c+2}, v{c}\nv_mov_b32 v{c+3}, v{c+1}")
        a(f"v_permlane32_swap_b32 v{c}, v{c+2}\nv_permlane32_swap_b32 v{c+1}, v{c+3}\nv_add_f32 v{c}, v{c}, v{c+2}\nv_add_f32 v{c+1}, v{c+1}, v{c+3}")
        mu_rstd(f"v{c}", f"v{c+1}", vT0, vT1, 1.0)
        a(f"ds_write_b64 {fS}, {vr(c,2)} offset:{256*rt}")
    barrier()
    a("s_waitcnt vmcnt(0)")
    a.label("L_ffn1_done"); a.restore(done); a.fence()

    GD, GB, RS = 16, 80, "v137"
    a(f"s_nop 1\nv_and_b32 {vT2}, 7, v0\nv_min_u32 {vT2}, 6, {vT2}\nv_lshlrev_b32 {vT2}, 2, {vT2}")
    a(f"s_lshl_b32 {sT0}, {sG}, 3\ns_add_u32 {sT0}, {sT0}, {sW}\ns_lshl_b32 {sT0}, {sT0}, 7\ns_add_u32 {sT0}, {sT0}, {WS_HOP + 0x10000}")
    a(f"s_lshl_b32 {sT1}, {sRT}, 8\nv_add_u32 {fS}, {sT1}, {fS}\nds_read_b32 {RS}, {fS} offset:4")
    a(f"s_mul_i32 {sT1}, {sG}, {224*1024}\ns_mul_i32 {sT2}, {sW}, {14*1024}\ns_add_u32 {sT1}, {sT1}, {sT2}\ns_add_u32 {sT1}, {sT1}, {WS_HF}")
    a(f"s_mul_i32 {sT2}, {sRT}, {112*1024}\ns_add_u32 {sT2}, {sT2}, {sT1}\ns_xor_b32 {sT3}, {sRT}, 1\ns_mul_i32 {sT3}, {sT3}, {112*1024}\ns_add_u32 {sT1}, {sT1}, {sT3}")
    a(f"s_lshl_b32 {sT3}, {sW}, 11\nv_add_u32 {vT0}, {sT3}, {vL16}\nv_add_u32 {vT1}, 0x10000, {vT0}")
    barrier(); ts()
    poll(vT2, sT0); ts()
    def gload(ks, sreg):
        if ks and ks % 4 == 0: a(f"s_add_u32 {sreg}, {sreg}, 4096")
        a(f"buffer_load_dwordx4 {vr(GB+4*ks,4)}, {vL16}, {WSS}, {sreg} offen offset:{1024*(ks&3)} sc1")
    def redwr(rho, sg):
        dl = rho + 2*sg; src = GD + 32*(1-rho) + 8*sg
        ad, off = (vT0, 16384*(dl-1)) if dl <= 4 else (vT1, 16384*(dl-5))
        wr128(ad, src, off); wr128(ad, src+4, off+1024)
    for ks in range(14): gload(ks, sT1)
    for ks in range(14):
        a.wait(regs=vr(GB+4*ks, 4))
        for tau in range(2): mfma(GD+16*tau, W2R+56*tau+4*ks, GB+4*ks, "0" if ks == 0 else vr(GD+16*tau,16))
        if ks >= 1: gload(ks-1, sT2)
    a("s_nop 3"); gload(13, sT2)
    if o.wb:
        a(f"s_or_b32 {sT0}, {sJ}, {sW}\ns_cbranch_scc1 L_nowb")
        sn = a.snapshot()
        a("buffer_wbl2 sc1\ns_branch L_wbdone")
        a.label("L_nowb"); a.restore(sn)
        a(f"buffer_load_dword {vT5}, off, {WSS}, 0")
        a.label("L_wbdone")
    for ks in range(14):
        a.wait(regs=vr(GB+4*ks, 4))
        for tau in (1, 0): mfma(GD+32+16*tau, W2R+56*tau+4*ks, GB+4*ks, "0" if ks == 0 else vr(GD+32+16*tau,16))
        if ks in (1, 4, 7, 10): redwr(1, ks // 3)
    a(f"v_and_b32 {vT2}, 31, v0\nv_lshlrev_b32 {vT2}, 10, {vT2}\nv_lshrrev_b32 {vT3}, 5, v0\nv_lshl_add_u32 {vT2}, {vT3}, 4, {vT2}")
    a(f"s_lshl_b32 {sT0}, {sJ}, 7\ns_lshl_b32 {sT1}, {sKQ}, 5\ns_add_u32 {sT0}, {sT0}, {sT1}\ns_add_u32 {sT0}, {sT0}, {sT4}")
    for sg in (2, 3, 1): redwr(0, sg)
    barrier(); ts()
    for dl in range(1, 8):
        a(f"v_xor_b32 {vT3}, {2048*dl | 16384*(dl-1)}, {vT0}")
        rd128(GB+8*(dl-1), vT3, 0); rd128(GB+8*(dl-1)+4, vT3, 1024)
    R = GD + 32
    for r in range(4): a(f"v_lshlrev_b32 v{GD+2*r}, 16, v{HK+r}\nv_and_b32 v{GD+2*r+1}, 0xffff0000, v{HK+r}")
    for dl in range(7):
        a.wait(regs=vr(GB+8*dl, 8))
        for r in range(0, 8, 2): a(f"v_pk_add_f32 {vr(R+r,2)}, {vr(R+r,2)}, {vr(GB+8*dl+r,2)}")
    for r in range(8): a(f"v_fma_f32 v{R+r}, {RS}, v{R+r}, v{GD+r}")
    for r in range(4): a(f"v_cvt_pk_bf16_f32 v{GD+r}, v{R+2*r}, v{R+2*r+1}")
    a(f"v_permlane32_swap_b32 v{GD}, v{GD+2}\nv_permlane32_swap_b32 v{GD+1}, v{GD+3}")
    a(f"buffer_store_dwordx4 {vr(GD,4)}, {vT2}, {OUTS}, {sT0} offen")
    if o.diag:
        ts()
        a(f"s_memrealtime s[96:97]\ns_waitcnt lgkmcnt(0)\ns_lshl_b32 {sT0}, s2, 3\ns_add_u32 {sT0}, {sT0}, {sW}\ns_lshl_b32 {sT0}, {sT0}, 7\ns_add_u32 {sT0}, {sT0}, {WS_DBG}")
        vals = ["s100", "s101", "s96"] + [f"s{TS0+i}" for i in range(nts[0])]
        a("s_mov_b64 exec, 1")
        for i, v in enumerate(vals): a(f"v_mov_b32 {vT0}, {v}\nbuffer_store_dword {vT0}, off, {WSS}, {sT0} offset:{4*i}")
    a("s_endpgm")

    a.label("L_fallback"); a.fence(); a.vm = []; a.lg = []
    a(f"s_waitcnt lgkmcnt(0)\ns_barrier\ns_mov_b32 {sFB}, 1\nv_mov_b32 {vT0}, 0xff800000\nv_mov_b32 {vT1}, 0xff800000\ns_mov_b32 {sKV}, {WS_KV}")
    a.label("L_fb1"); a.fence()
    a(f"buffer_load_dwordx4 {vr(KVR,4)}, {vK}, {WSS}, {sKV} offen sc1\ns_waitcnt vmcnt(0)")
    for h, m in ((0, vT0), (1, vT1)):
        mfma(S0, KVR, Q+4*h, "0")
        for r in range(0, 16, 2): a(f"v_max3_f32 {m}, v{S0+r}, v{S0+r+1}, {m}")
    a(f"s_add_u32 {sKV}, {sKV}, 2048\ns_cmp_lt_u32 {sKV}, {WS_KV + 0x20000}\ns_cbranch_scc1 L_fb1")
    for m in (vT0, vT1):
        a(f"v_mov_b32 {vT2}, {m}\nv_permlane32_swap_b32 {vT2}, {m}\nv_max_f32 {m}, {m}, {vT2}")
    for r in range(32): a(f"v_mov_b32 v{O0+r}, 0")
    a(f"s_lshl_b32 {sKV}, {sKH}, 16\ns_add_u32 {sKV}, {sKV}, {WS_KV}\ns_add_u32 {sT0}, {sKV}, 0x10000")
    a.label("L_fb2"); a.fence(); a("s_nop 11")
    a(f"buffer_load_dwordx4 {vr(KVR,4)}, {vK}, {WSS}, {sKV} offen sc1\ns_mov_b64 exec, {VMASK}")
    a(f"buffer_load_dwordx4 {vr(KVR+4,4)}, {vV}, {WSS}, {sKV} offen offset:1024 sc1\nbuffer_load_dwordx4 {vr(KVR+8,4)}, {vV}, {WSS}, {sKV} offen offset:1536 sc1")
    a("s_mov_b64 exec, -1\ns_waitcnt vmcnt(0)")
    for h, m in ((0, vT0), (1, vT1)):
        S = S1 if h else S0
        mfma(S, KVR, Q+4*h, "0")
        for r in range(16): a(f"v_sub_f32 v{S+r}, v{S+r}, {m}")
        for r in range(16): a(f"v_exp_f32 v{S+r}, v{S+r}")
        smf(h, 0, 0, S); smf(h, 0, 1, S)
    a(f"s_add_u32 {sKV}, {sKV}, 2048\ns_cmp_lt_u32 {sKV}, {sT0}\ns_cbranch_scc1 L_fb2\ns_branch L_attn_done")
    a.label("L_end")
    a("s_endpgm")
    return a

def wrap(a):
    head = "".join(l for l in open(f"cdna_kernels/{NAME}.s.ref") if l.startswith(";") and "@launch" not in l)
    k = NAME + "_kernel"
    return head + f"""; @launch grid=(256,1,1) block=(512,1,1) lds=163840
.amdgcn_target "amdgcn-amd-amdhsa--gfx950"
.text
.globl {k}
.p2align 8
.type {k},@function
{k}:
{a.text()}.section .rodata,"a"
.p2align 6
.amdhsa_kernel {k}
  .amdhsa_next_free_vgpr 256
  .amdhsa_next_free_sgpr 102
  .amdhsa_accum_offset 256
  .amdhsa_group_segment_fixed_size 0
  .amdhsa_kernarg_size 88
  .amdhsa_user_sgpr_count 2
  .amdhsa_user_sgpr_kernarg_segment_ptr 1
  .amdhsa_system_sgpr_workgroup_id_x 1
.end_amdhsa_kernel
"""

if __name__ == "__main__":
    o = Opt(); out = f"cdna_kernels/{NAME}.s"
    for arg in sys.argv[1:]:
        k, v = arg.split("=")
        if k == "out": out = v
        else: setattr(o, k, type(getattr(o, k))(int(v)) if not isinstance(getattr(o, k), str) else v)
    a = gen(o)
    open(out, "w").write(wrap(a))
    print(out, "instr", a.ninstr, "nops", a.nops)
```
